```python
import torch

def _softmax(x, axis=-1):
    return torch.softmax(x, dim=axis)
def _gelu(x):
    return torch.nn.functional.gelu(x, approximate="tanh")
def _silu(x):
    return torch.nn.functional.silu(x)
def _sigmoid(x):
    return torch.sigmoid(x)
def _layernorm(x, axis=-1, eps=1e-5):
    m = x.mean(dim=axis, keepdim=True)
    v = x.var(dim=axis, keepdim=True, unbiased=False)
    return (x - m) / torch.sqrt(v + eps)
def _scatter_add(tgt, idx, src, axis=0):
    return tgt.clone().index_add_(axis, idx, src)
def _segment_sum(src, seg, n):
    out = torch.zeros((n,) + src.shape[1:], dtype=src.dtype)
    return out.index_add_(0, seg, src)
def _pad(x, pw):
    flat = tuple(v for pair in reversed(pw) for v in pair)
    return torch.nn.functional.pad(x, flat)

kernel_name = 'parallel_sum__ssm_conv_h3__glu_gated_glu__prompt'

def setup_inputs():

    _w = (lambda a: (lambda t: t.to(torch.bfloat16) if t.is_floating_point() else t)(torch.as_tensor(a)))
    def _A_setup():
        B, S, D = 1, 2048, 1024
        ks = 4
        return {
            "q": _w((lambda *s: torch.randn(*s, dtype=torch.bfloat16) * 0.05)(B, S, D)),
            "k": _w((lambda *s: torch.randn(*s, dtype=torch.bfloat16) * 0.8)(B, S, D)),
            "v": _w((lambda *s: torch.randn(*s, dtype=torch.bfloat16) * 0.8)(B, S, D)),
            "shift_k": _w((lambda *s: torch.randn(*s, dtype=torch.bfloat16) * 0.8)(D, ks) * 0.5),
            "ssm_k": _w((lambda *s: torch.randn(*s, dtype=torch.bfloat16) * 0.8)(D, S) * (1.0 / S ** 0.5)),
            "ssm_D": _w((lambda *s: torch.randn(*s, dtype=torch.bfloat16) * 0.8)(D)),
        }
    _A_in = _A_setup()

    def _B_setup():
        B, S, D, F = 1, 2048, 1024, 3584
        return {
            "x": _w((lambda *s: torch.randn(*s, dtype=torch.bfloat16) * 0.05)(B, S, D)),
            "w_gate": _w((lambda *s: torch.randn(*s, dtype=torch.bfloat16) * 0.05)(D, F)),
            "w_up": _w((lambda *s: torch.randn(*s, dtype=torch.bfloat16) * 0.05)(D, F)),
            "w_down": _w((lambda *s: torch.randn(*s, dtype=torch.bfloat16) * 0.05)(F, D)),
        }
    _B_in = _B_setup()

    return {
        "A_q": _A_in["q"],
        "A_k": _A_in["k"],
        "A_v": _A_in["v"],
        "A_shift_k": _A_in["shift_k"],
        "A_ssm_k": _A_in["ssm_k"],
        "A_ssm_D": _A_in["ssm_D"],
        "B_x": _B_in["x"],
        "B_w_gate": _B_in["w_gate"],
        "B_w_up": _B_in["w_up"],
        "B_w_down": _B_in["w_down"],
    }

def reference(A_q, A_k, A_v, A_shift_k, A_ssm_k, A_ssm_D, B_x, B_w_gate, B_w_up, B_w_down):
    def _A_ref(q, k, v, shift_k, ssm_k, ssm_D):
        B, S, D = q.shape
        ks = shift_k.shape[-1]
        k_pad = _pad(k, ((0, 0), (ks - 1, 0), (0, 0)))
        k_shift = torch.zeros_like(k)
        for t in range(ks):
            k_shift = k_shift + k_pad[:, t:t + S, :] * shift_k[:, ks - 1 - t][None, None, :]
        kv = k_shift * v
        L = 2 * S
        kv_pad = _pad(kv, ((0, 0), (0, S), (0, 0)))
        kf_pad = _pad(ssm_k, ((0, 0), (0, S)))
        kv_f = (lambda x, axes=(-2,-1): torch.fft.rfft2(x.float(), dim=axes))(kv_pad[:, None, :, :], axes=(1, 2))
        kf_f = (lambda x, axes=(-2,-1): torch.fft.rfft2(x.float(), dim=axes))(kf_pad[:, None, :], axes=(1, 2))
        kf_f = (lambda x, *d: x.permute(*d))(kf_f, 1, 2, 0)
        y_f = kv_f * kf_f[None, :, :, :]
        y = (lambda x, s, axes=(-2,-1): torch.fft.irfft2(x, s=s, dim=axes).to(torch.bfloat16))(y_f, (1, L), axes=(1, 2))[:, 0, :S, :]
        y = y + kv * ssm_D[None, None, :]
        return q * y

    def _B_ref(x, w_gate, w_up, w_down):
        g = torch.einsum("bsd,df->bsf", x, w_gate)
        u = torch.einsum("bsd,df->bsf", x, w_up)
        h = _sigmoid(g) * u
        return torch.einsum("bsf,fd->bsd", h, w_down)

    x = A_q
    xn = _layernorm(x, axis=-1)
    return x + _A_ref(xn, A_k, A_v, A_shift_k, A_ssm_k, A_ssm_D) + _B_ref(xn, B_w_gate, B_w_up, B_w_down)
```

```python
class Asm:
    def __init__(self):
        self.lines = []
        self.uid = 0
    def __call__(self, s):
        for l in s.split("\n"):
            l = l.strip()
            if l:
                self.lines.append("    " + l)
    def label(self, name):
        self.lines.append(name + ":")
    def raw(self, s):
        self.lines.append(s)
    def comment(self, s):
        self.lines.append("    ; " + s)
    def newlabel(self, base):
        self.uid += 1
        return f"{base}_{self.uid}"
    def text(self):
        return "\n".join(self.lines) + "\n"

def vr(b, n=1):
    return f"v{b}" if n == 1 else f"v[{b}:{b+n-1}]"
def ar(b, n=1):
    return f"a{b}" if n == 1 else f"a[{b}:{b+n-1}]"
def sr(b, n=1):
    return f"s{b}" if n == 1 else f"s[{b}:{b+n-1}]"

def kernel_head(a, name):
    a.raw(f".globl {name}")
    a.raw(".p2align 8")
    a.raw(f".type {name},@function")
    a.label(name)

def kernel_desc(name, vgpr, sgpr, accum):
    return f""".p2align 6
.amdhsa_kernel {name}
  .amdhsa_next_free_vgpr {vgpr}
  .amdhsa_next_free_sgpr {sgpr}
  .amdhsa_accum_offset {accum}
  .amdhsa_group_segment_fixed_size 0
  .amdhsa_kernarg_size 104
  .amdhsa_user_sgpr_count 2
  .amdhsa_user_sgpr_kernarg_segment_ptr 1
  .amdhsa_system_sgpr_workgroup_id_x 1
.end_amdhsa_kernel
"""

def srd(a, d, base_lo, base_hi, nrec, add=None):
    if add is None:
        a(f"s_mov_b32 s{d}, s{base_lo}")
        a(f"s_mov_b32 s{d+1}, s{base_hi}")
    else:
        a(f"s_add_u32 s{d}, s{base_lo}, {add}")
        a(f"s_addc_u32 s{d+1}, s{base_hi}, 0")
    a(f"s_mov_b32 s{d+2}, {nrec}")
    a(f"s_mov_b32 s{d+3}, 0x20000")

class VmTrack:
    def __init__(self):
        self.seq = []
        self.pos = {}
        self.site = {}
    def issue(self, tag):
        self.pos[tag] = len(self.seq)
        self.seq.append(tag)
    def need(self, site, tags):
        last = max(self.pos[t] for t in tags)
        n = len(self.seq) - 1 - last
        self.site[site] = min(self.site.get(site, 10**9), n)
```

```python
import sys
sys.path.insert(0, "dev")
from asmlib import *

XN_OFF   = 0x0000000
H_OFF    = 0x0400000
UR_OFF   = 0x1200000
ZT_OFF   = 0x1700000
ST_OFF   = 0x1B00000
UR_PITCH = 4608
WS_BYTES = 268435456

HEADER = open("parallel_sum__ssm_conv_h3__glu_gated_glu__prompt.s.ref").read().split("; Override")[0]

def bf16r(a, dst, src, tmp=None):
    a(f"v_cvt_pk_bf16_f32 {dst}, {src}, {src}")
    a(f"v_and_b32 {dst}, 0xffff0000, {dst}")

def gen_prep(a):
    kernel_head(a, "prep_kernel")
    a("s_cmp_ge_u32 s2, 512\ns_cbranch_scc1 prep_end")
    a("s_load_dwordx4 s[4:7], s[0:1], 0")
    a("s_load_dwordx4 s[8:11], s[0:1], 16")
    a("s_load_dwordx2 s[12:13], s[0:1], 96")
    a("v_and_b32 v1, 63, v0")
    a("v_lshrrev_b32 v2, 6, v0")
    a("s_waitcnt lgkmcnt(0)")
    a("s_cmp_ge_u32 s2, 256\ns_cbranch_scc1 prep_ut")
    srd(a, 16, 4, 5, 4194304)
    srd(a, 20, 12, 13, 4194304, add=XN_OFF)
    srd(a, 24, 12, 13, 16384, add=ST_OFF)
    a("v_and_b32 v3, 7, v1")
    a("v_lshrrev_b32 v4, 3, v1")
    a("v_lshlrev_b32 v5, 11, v3")
    a("v_lshl_add_u32 v6, v2, 5, v4")
    a("v_lshl_add_u32 v5, v6, 4, v5")
    a("s_lshl_b32 s28, s2, 14")
    for i in range(4):
        a(f"buffer_load_dwordx4 v[{8+4*i}:{11+4*i}], v5, s[16:19], s28 offen offset:{i*128}")
    a("v_lshl_add_u32 v6, v2, 3, v4")
    a("v_lshlrev_b32 v6, 2, v6")
    a("v_lshl_add_u32 v6, v3, 7, v6")
    a("v_lshlrev_b32 v7, 7, v3")
    a("s_waitcnt vmcnt(0)")
    for d in range(16):
        a(f"v_lshlrev_b32 v{32+2*d}, 16, v{8+d}")
        a(f"v_and_b32 v{33+2*d}, 0xffff0000, v{8+d}")
    a("v_add_f32 v24, v32, v33\nv_add_f32 v25, v34, v35")
    for e in range(4, 32, 2):
        a(f"v_add_f32 v24, v24, v{32+e}\nv_add_f32 v25, v25, v{33+e}")
    a("v_add_f32 v24, v24, v25")
    a("ds_write_b32 v6, v24")
    a("s_waitcnt lgkmcnt(0)\ns_barrier")
    def rowsum(off, dst):
        for i in range(8):
            a(f"ds_read_b128 v[{64+4*i}:{67+4*i}], v7 offset:{off+16*i}")
        a("s_waitcnt lgkmcnt(0)")
        a(f"v_add_f32 {dst}, v64, v65\nv_add_f32 v25, v66, v67")
        for e in range(4, 32, 2):
            a(f"v_add_f32 {dst}, {dst}, v{64+e}\nv_add_f32 v25, v25, v{65+e}")
        a(f"v_add_f32 {dst}, {dst}, v25")
        a(f"v_mul_f32 {dst}, 0x3a800000, {dst}")
    rowsum(0, "v26")
    a("v_mov_b32 v24, 0\nv_mov_b32 v25, 0")
    for e in range(0, 32, 2):
        a(f"v_sub_f32 v28, v{32+e}, v26\nv_sub_f32 v29, v{33+e}, v26")
        a(f"v_fmac_f32 v24, v28, v28\nv_fmac_f32 v25, v29, v29")
    a("v_add_f32 v24, v24, v25")
    a("ds_write_b32 v6, v24 offset:1024")
    a("s_waitcnt lgkmcnt(0)\ns_barrier")
    rowsum(1024, "v27")
    bf16r(a, "v26", "v26")
    bf16r(a, "v27", "v27")
    a("v_add_f32 v27, 0x3727c5ac, v27")
    bf16r(a, "v27", "v27")
    a("v_sqrt_f32 v27, v27\ns_nop 0")
    bf16r(a, "v27", "v27")
    a("v_rcp_f32 v27, v27\ns_nop 0")
    for d in range(16):
        a(f"v_sub_f32 v28, v{32+2*d}, v26\nv_sub_f32 v29, v{33+2*d}, v26")
        a("v_cvt_pk_bf16_f32 v28, v28, v29")
        a("v_and_b32 v29, 0xffff0000, v28\nv_lshlrev_b32 v28, 16, v28")
        a("v_mul_f32 v28, v28, v27\nv_mul_f32 v29, v29, v27")
        a(f"v_cvt_pk_bf16_f32 v{8+d}, v28, v29")
    a("v_lshrrev_b32 v5, 1, v4")
    a("v_lshl_add_u32 v5, v2, 4, v5")
    a("v_lshlrev_b32 v5, 11, v5")
    a("v_and_b32 v6, 1, v4")
    a("v_lshl_add_u32 v5, v6, 9, v5")
    a("v_lshl_add_u32 v5, v3, 4, v5")
    a("s_lshr_b32 s28, s2, 3\ns_lshl_b32 s28, s28, 17")
    a("s_lshr_b32 s29, s2, 2\ns_and_b32 s29, s29, 1\ns_lshl_b32 s29, s29, 10\ns_add_u32 s28, s28, s29")
    a("s_and_b32 s29, s2, 3\ns_lshl_b32 s29, s29, 7\ns_add_u32 s28, s28, s29")
    for i in range(4):
        a(f"buffer_store_dwordx4 v[{8+4*i}:{11+4*i}], v5, s[20:23], s28 offen")
        if i < 3:
            a("s_add_u32 s28, s28, 8192")
    a("v_cmp_gt_u32 vcc, 8, v0\ns_and_saveexec_b64 s[30:31], vcc\ns_cbranch_execz prep_end")
    a("v_lshlrev_b32 v5, 3, v0\ns_lshl_b32 s28, s2, 6")
    a("buffer_store_dwordx2 v[26:27], v5, s[24:27], s28 offen")
    a("s_endpgm")
    a.label("prep_ut")
    srd(a, 16, 6, 7, 4194304)
    srd(a, 20, 8, 9, 4194304)
    srd(a, 24, 10, 11, 8192)
    srd(a, 28, 12, 13, 1024*UR_PITCH, add=UR_OFF)
    a("s_sub_u32 s3, s2, 256\ns_lshr_b32 s32, s3, 4\ns_and_b32 s33, s3, 15")
    a("v_and_b32 v3, 7, v1")
    a("v_lshrrev_b32 v4, 3, v1")
    a("v_lshl_add_u32 v4, v2, 3, v4")
    a("s_lshl_b32 s34, s32, 18\ns_lshl_b32 s35, s33, 7\ns_add_u32 s34, s34, s35\ns_sub_u32 s34, s34, 6144")
    a("v_lshlrev_b32 v5, 13, v4")
    a("v_lshl_add_u32 v5, v3, 4, v5")
    a("v_add_u32 v5, s34, v5")
    for r in range(1, 7):
        a(f"v_add_u32 v{5+r}, {2048*r}, v5")
    for r in range(7):
        a(f"buffer_load_dwordx4 v[{16+4*r}:{19+4*r}], v{5+r}, s[16:19], 0 offen")
    for r in range(4):
        a(f"buffer_load_dwordx4 v[{44+4*r}:{47+4*r}], v{8+r}, s[20:23], 0 offen")
    a("v_lshlrev_b32 v12, 6, v3\ns_lshl_b32 s35, s33, 9")
    for r in range(4):
        a(f"buffer_load_dwordx4 v[{60+4*r}:{63+4*r}], v12, s[24:27], s35 offen offset:{16*r}")
    a("v_lshlrev_b32 v13, 3, v4\nv_sub_u32 v13, 248, v13\nv_lshlrev_b32 v14, 4, v3\nv_xor_b32 v13, v13, v14\nv_lshl_add_u32 v13, v3, 11, v13")
    a("s_waitcnt vmcnt(0)")
    def unp(dst, src, hi):
        if hi: a(f"v_and_b32 {dst}, 0xffff0000, {src}")
        else:  a(f"v_lshlrev_b32 {dst}, 16, {src}")
    for e in range(8):
        p, hi = e >> 1, e & 1
        for r in range(7): unp(f"v{80+r}", f"v{16+4*r+p}", hi)
        for r in range(4): unp(f"v{88+r}", f"v{44+4*r+p}", hi)
        unp("v92", f"v{60+2*e}", 0); unp("v93", f"v{60+2*e}", 1)
        unp("v94", f"v{61+2*e}", 0); unp("v95", f"v{61+2*e}", 1)
        for r in range(4):
            a(f"v_mul_f32 v{96+r}, v{80+r}, v95")
        for r in range(4):
            a(f"v_fmac_f32 v{96+r}, v{81+r}, v94")
        for r in range(4):
            a(f"v_fmac_f32 v{96+r}, v{82+r}, v93")
        for r in range(4):
            a(f"v_fmac_f32 v{96+r}, v{83+r}, v92")
        for r in range(4):
            a(f"v_mul_f32 v{96+r}, v{96+r}, v{88+r}")
        o = 100 + 2*(e & 1)
        a(f"v_cvt_pk_bf16_f32 v{o}, v99, v98\nv_cvt_pk_bf16_f32 v{o+1}, v97, v96")
        a(f"ds_write_b64 v13, v[{o}:{o+1}] offset:{e*256}")
    a("v_lshrrev_b32 v5, 4, v1")
    a("v_lshl_add_u32 v5, v2, 4, v5")
    a("v_and_b32 v6, 15, v1")
    a("v_lshlrev_b32 v7, 1, v2")
    a("v_xor_b32 v8, v6, v7\nv_lshlrev_b32 v8, 4, v8\nv_lshl_add_u32 v8, v5, 8, v8")
    a("v_or_b32 v7, 1, v7\nv_xor_b32 v9, v6, v7\nv_lshlrev_b32 v9, 4, v9\nv_lshl_add_u32 v9, v5, 8, v9")
    a("s_waitcnt lgkmcnt(0)\ns_barrier")
    for i in range(4):
        a(f"ds_read_b128 v[{16+4*i}:{19+4*i}], v{8+(i>>1)} offset:{i*1024}")
    a(f"s_mov_b32 s36, {UR_PITCH}\nv_mul_lo_u32 v10, v5, s36\nv_lshl_add_u32 v10, v6, 4, v10")
    a(f"s_mul_i32 s34, s33, {64*UR_PITCH}\ns_lshl_b32 s35, s32, 8\ns_sub_u32 s35, 3840, s35\ns_add_u32 s35, s35, s34")
    a("s_waitcnt lgkmcnt(0)")
    for i in range(4):
        a(f"buffer_store_dwordx4 v[{16+4*i}:{19+4*i}], v10, s[28:31], s35 offen")
        if i < 3:
            a(f"s_add_u32 s35, s35, {4*UR_PITCH}")
    a("s_cmp_lg_u32 s32, 0\ns_cbranch_scc1 prep_end")
    a("v_lshrrev_b32 v5, 5, v1\nv_lshl_add_u32 v5, v2, 4, v5\nv_mul_lo_u32 v10, v5, s36\nv_and_b32 v6, 31, v1\nv_lshl_add_u32 v10, v6, 4, v10")
    a("v_mov_b32 v40, 0\nv_mov_b32 v41, 0\nv_mov_b32 v42, 0\nv_mov_b32 v43, 0")
    a("s_add_u32 s34, s34, 4096")
    for i in range(8):
        a(f"buffer_store_dwordx4 v[40:43], v10, s[28:31], s34 offen")
        if i < 7:
            a(f"s_add_u32 s34, s34, {2*UR_PITCH}")
    a.label("prep_end")
    a("s_endpgm")
    return kernel_desc("prep_kernel", 104, 48, 104)

CONV_WB = 27136
def gen_conv(a):
    kernel_head(a, "conv_kernel")
    a("s_cmp_ge_u32 s2, 256\ns_cbranch_scc1 conv_end")
    a("s_load_dwordx4 s[4:7], s[0:1], 32")
    a("s_load_dwordx2 s[8:9], s[0:1], 96")
    a("v_and_b32 v1, 63, v0\nv_lshrrev_b32 v2, 6, v0\ns_nop 0\nv_readfirstlane_b32 s3, v2")
    a("s_lshl_b32 s10, s2, 2\ns_add_u32 s10, s10, s3")
    a(f"s_mul_i32 s11, s3, {CONV_WB}")
    a("s_waitcnt lgkmcnt(0)")
    a("s_lshl_b32 s28, s10, 12")
    a("s_add_u32 s12, s4, s28\ns_addc_u32 s13, s5, 0\ns_sub_u32 s14, 4194304, s28\ns_mov_b32 s15, 0x20000")
    a(f"s_mul_i32 s29, s10, {UR_PITCH}\ns_add_u32 s29, s29, {UR_OFF}")
    a(f"s_add_u32 s16, s8, s29\ns_addc_u32 s17, s9, 0\ns_mov_b32 s18, 8192\ns_mov_b32 s19, 0x20000")
    a(f"s_add_u32 s29, s28, {ZT_OFF}")
    a(f"s_add_u32 s20, s8, s29\ns_addc_u32 s21, s9, 0\ns_mov_b32 s22, 4096\ns_mov_b32 s23, 0x20000")
    srd(a, 24, 6, 7, 2048)
    a("v_lshlrev_b32 v3, 4, v1")
    UB = 16640
    for rho in (1, 0):
        for i in range(5):
            if i in (0, 4):
                a(f"s_add_u32 m0, s11, {UB + (5152 if rho else 0) + (4096 if i == 4 else 0)}")
                a(f"s_mov_b32 s30, {(0 if rho else 2) + (4096 if i == 4 else 0)}")
            a(f"buffer_load_dwordx4 v3, s[16:19], s30 offen offset:{(i%4)*1024} lds")
    for q in range(4):
        a(f"s_add_u32 m0, s11, {q*4160+64}\ns_mov_b32 s30, {4*(q+1)}")
        for i in range(4):
            a(f"buffer_load_dwordx4 v3, s[12:15], s30 offen offset:{i*1024} lds")
    a("v_and_b32 v4, 15, v1\nv_lshrrev_b32 v5, 4, v1")
    a("v_add_u32 v6, v4, v5\nv_subrev_u32 v6, 15, v6\nv_lshlrev_b32 v6, 2, v6")
    a("buffer_load_dword v7, v6, s[12:15], 0 offen")
    a("s_lshl_b32 s30, s10, 1\nv_mov_b32 v8, 0")
    a("buffer_load_ushort v9, v8, s[24:27], s30 offen")
    a("s_mov_b32 s30, 4160\nv_mul_lo_u32 v6, v5, s30\nv_lshl_add_u32 v6, v4, 2, v6\nv_add_u32 v6, s11, v6")
    a("v_and_b32 v10, 3, v4\nv_mul_lo_u32 v10, v10, s30\nv_lshrrev_b32 v11, 2, v4\nv_add_u32 v11, v11, v5\nv_lshl_add_u32 v10, v11, 4, v10\nv_add_u32 v10, s11, v10")
    a(f"v_and_b32 v11, 1, v4\nv_mul_u32_u24 v11, 5152, v11\nv_lshrrev_b32 v12, 1, v4\nv_lshlrev_b32 v12, 6, v12\nv_sub_u32 v11, v11, v12\nv_lshl_add_u32 v11, v5, 4, v11")
    a(f"s_add_u32 s30, s11, {UB+448}\nv_add_u32 v11, s30, v11")
    ACC = 64
    for r in range(32):
        a(f"v_mov_b32 v{ACC+r}, 0")
    a("s_waitcnt vmcnt(0)")
    a("ds_write_b32 v6, v7")
    a("v_lshlrev_b32 v9, 16, v9")
    a("s_waitcnt lgkmcnt(0)")
    HS = [96, 160]; US = [128, 192]
    def reads(s, extra):
        l = []
        for kp in range(8):
            l.append(f"ds_read_b128 v[{HS[s]+4*kp}:{HS[s]+4*kp+3}], v10 offset:{512*kp+extra}")
            be = kp
            l.append(f"ds_read_b128 v[{US[s]+4*be}:{US[s]+4*be+3}], v11 offset:{512*(7-be)+extra}")
        return l
    for l in reads(0, 0): a(l)
    a("s_mov_b32 s31, 0")
    a.label("conv_loop")
    for s in range(2):
        a("s_waitcnt lgkmcnt(0)")
        rd = reads(1 - s, 64 * (s + 1))
        n = 0
        for kp in range(8):
            for b in range(kp, 8):
                be = b - kp
                a(f"v_mfma_f32_16x16x32_bf16 v[{ACC+4*b}:{ACC+4*b+3}], v[{US[s]+4*be}:{US[s]+4*be+3}], v[{HS[s]+4*kp}:{HS[s]+4*kp+3}], v[{ACC+4*b}:{ACC+4*b+3}]")
                if n < 16:
                    a(rd[n])
                n += 1
    a("v_add_u32 v10, 128, v10\nv_add_u32 v11, 128, v11")
    a("s_add_u32 s31, s31, 1\ns_cmp_lt_u32 s31, 4\ns_cbranch_scc1 conv_loop")
    a("s_waitcnt lgkmcnt(0)")
    a("v_lshlrev_b32 v12, 7, v5\nv_lshl_add_u32 v12, v4, 2, v12")
    a(f"s_add_u32 s30, s11, {UB+5152+4092-(512*7+64)}\nv_sub_u32 v13, s30, v12")
    for b in range(8):
        for rp in range(2):
            a(f"ds_read_b32 v{96+2*b+rp}, v13 offset:{512*7+64-(512*b+64*rp)}")
    a("s_waitcnt lgkmcnt(0)")
    for b in range(8):
        for rp in range(2):
            u = 96 + 2*b + rp
            r0 = ACC + 4*b + 2*rp
            a(f"v_and_b32 v14, 0xffff0000, v{u}\nv_lshlrev_b32 v15, 16, v{u}")
            a(f"v_fmac_f32 v{r0}, v14, v9\nv_fmac_f32 v{r0+1}, v15, v9")
            a(f"v_cvt_pk_bf16_f32 v{u}, v{r0}, v{r0+1}")
            a(f"buffer_store_dword v{u}, v12, s[20:23], 0 offen offset:{512*b+64*rp}")
    a.label("conv_end")
    a("s_endpgm")
    return kernel_desc("conv_kernel", 224, 48, 224)

G1_SLOT = 28928
G1_UP = 14464
G1_RING = 5
def gen_gemm1(a):
    NT = 7
    kernel_head(a, "gemm1_kernel")
    a("s_cmp_ge_u32 s2, 256\ns_cbranch_scc1 g1_end")
    a("s_load_dwordx4 s[4:7], s[0:1], 56")
    a("s_load_dwordx2 s[8:9], s[0:1], 96")
    a("v_and_b32 v1, 63, v0\nv_lshrrev_b32 v2, 6, v0\ns_nop 0\nv_readfirstlane_b32 s24, v2")
    a("s_and_b32 s10, s2, 7\ns_lshl_b32 s10, s10, 2\ns_lshr_b32 s11, s2, 3\ns_and_b32 s11, s11, 3\ns_add_u32 s10, s10, s11")
    a("s_lshr_b32 s11, s2, 5")
    for i in range(7):
        a(f"v_add_u32 v12, {64*i}, v1\nv_mul_u32_u24 v13, 4682, v12\nv_lshrrev_b32 v13, 16, v13")
        a(f"v_mul_u32_u24 v14, 14, v13\nv_sub_u32 v14, v12, v14")
        a(f"v_mul_u32_u24 v13, 7168, v13\nv_lshl_add_u32 v{3+i}, v14, 4, v13")
        if i & 3:
            a(f"v_subrev_u32 v{3+i}, {(i&3)*1024}, v{3+i}")
    a("v_lshlrev_b32 v10, 4, v1")
    a("v_lshrrev_b32 v12, 5, v1\nv_lshlrev_b32 v12, 3, v12\nv_bfe_u32 v13, v1, 2, 2\nv_add_u32 v12, v12, v13\nv_mul_u32_u24 v12, 224, v12")
    a(f"v_bfe_u32 v13, v1, 4, 1\nv_mul_u32_u24 v13, {G1_UP}, v13\nv_add_u32 v12, v12, v13\nv_and_b32 v13, 3, v1\nv_lshl_add_u32 v11, v13, 3, v12")
    a("s_waitcnt lgkmcnt(0)")
    a("s_cmp_ge_u32 s24, 2\ns_cselect_b32 s12, s6, s4\ns_cselect_b32 s13, s7, s5\ns_mov_b32 s14, 7340032\ns_mov_b32 s15, 0x20000")
    a(f"s_lshl_b32 s28, s11, 2\ns_add_u32 s28, s28, s24\ns_lshl_b32 s29, s28, 17\ns_add_u32 s29, s29, {XN_OFF}")
    a("s_add_u32 s16, s8, s29\ns_addc_u32 s17, s9, 0\ns_mov_b32 s18, 131072\ns_mov_b32 s19, 0x20000")
    srd(a, 20, 8, 9, 14680064, add=H_OFF)
    a("s_and_b32 s29, s24, 1\ns_mul_i32 s25, s29, 229376\ns_mul_i32 s32, s10, 224\ns_add_u32 s25, s25, s32")
    a(f"s_mul_i32 s33, s29, 7168\ns_lshr_b32 s29, s24, 1\ns_mul_i32 s29, s29, {G1_UP}\ns_add_u32 s33, s33, s29")
    a("s_mov_b32 s27, s33\ns_mov_b32 s26, 0\ns_mov_b32 s31, 0")
    a(f"s_add_u32 s34, s33, {G1_RING*G1_SLOT}")
    WF = 0; XR = 32; ACC = 32

    vt = VmTrack()
    state = {"emit": True}
    def E(s):
        if state["emit"]: a(s)
    def dma(stage, i):
        if i == 0: E("s_mov_b32 m0, s27")
        if i == 4: E("s_add_u32 m0, s27, 4096")
        if i in (0, 4): E("s_nop 0")
        E(f"buffer_load_dwordx4 v{3+i}, s[12:15], s25 offen offset:{(i&3)*1024} lds")
        vt.issue(("W", stage, i))
        if i == 6:
            E(f"s_add_u32 s25, s25, 458752\ns_add_u32 s27, s27, {G1_SLOT}\ns_cmp_ge_u32 s27, s34\ns_cselect_b32 s27, s33, s27")
    def xload(t):
        tr = t % 8
        for h in range(2):
            E(f"buffer_load_dwordx4 a[{XR+8*tr+4*h}:{XR+8*tr+4*h+3}], v10, s[16:19], s26 offen offset:{(t&1)*2048+h*1024}")
            vt.issue(("X", t, h))
        if t & 1: E("s_add_u32 s26, s26, 4096")
    def wreads(j, n):
        return [f"ds_read_b64_tr_b16 a[{WF+4*n+2*rd}:{WF+4*n+2*rd+1}], v2 offset:{(16*j+4*rd)*224+32*n}" for rd in range(2)]
    waits = {}
    def vwait(site, tags):
        vt.need(site, tags)
        return waits.get(site, 0)

    def prologue():
        for i in range(7): dma(0, i)
        xload(0); xload(1)
        for i in range(7): dma(1, i)
        xload(2)
        dma(2, 0); dma(2, 1); xload(3)
        dma(2, 2); dma(2, 3); xload(4)
        dma(2, 4); dma(2, 5); xload(5)
        dma(2, 6); xload(6)
        dma(3, 0); dma(3, 1); xload(7)
        for r in range(2*NT*16):
            E(f"v_mov_b32 v{ACC+r}, 0")
        n = vwait("pro", [("W", 0, i) for i in range(7)])
        E(f"s_waitcnt vmcnt({n})\ns_barrier\nv_mov_b32 v2, v11")
        for nn in range(NT):
            for l in wreads(0, nn): E(l)

    def stage_body(s, sp):
        for j in range(4):
            t = 4*s + j
            tr = t % 8
            if j == 3:
                n = vwait(("B", sp), [("W", s+1, i) for i in range(7)])
                E(f"s_waitcnt vmcnt({n})\ns_barrier")
                E(f"s_add_u32 s31, s31, {G1_SLOT}\ns_cmp_ge_u32 s31, {G1_RING*G1_SLOT}\ns_cselect_b32 s31, 0, s31\nv_add_u32 v2, s31, v11")
            nx = vwait(("X", sp, j), [("X", t, 0), ("X", t, 1)])
            if j == 3: dl = [(s+4, 0), (s+4, 1)]
            elif j == 0: dl = [(s+3, 2), (s+3, 3)]
            elif j == 1: dl = [(s+3, 4), (s+3, 5)]
            else: dl = [(s+3, 6)]
            for n in range(NT):
                if n == 0: E(f"s_waitcnt vmcnt({nx}) lgkmcnt(10)")
                elif n in (2, 4): E("s_waitcnt lgkmcnt(10)")
                elif n == 6: E("s_waitcnt lgkmcnt(12)")
                for h in range(2):
                    c = ACC + (h*NT + n)*16
                    E(f"v_mfma_f32_32x32x16_bf16 v[{c}:{c+15}], a[{WF+4*n}:{WF+4*n+3}], a[{XR+8*tr+4*h}:{XR+8*tr+4*h+3}], v[{c}:{c+15}]")
                    if h == 0 and n in (1, 4) and dl:
                        dma(*dl.pop(0))
                for l in wreads((j+1) % 4, n): E(l)
            xload(t + 8)

    state["emit"] = False
    prologue()
    for s in range(16): stage_body(s, s & 1)
    waits.update(vt.site)
    assert max(waits.values()) <= 63, waits
    vt2 = VmTrack(); vt.__dict__.update(vt2.__dict__)
    state["emit"] = True
    prologue()
    a("s_mov_b32 s35, 0")
    a.label("g1_loop")
    stage_body(0, 0); stage_body(1, 1)
    a("s_add_u32 s35, s35, 1\ns_cmp_lt_u32 s35, 8\ns_cbranch_scc1 g1_loop")
    a("s_nop 15")
    a("s_lshl_b32 s28, s11, 3\ns_lshl_b32 s29, s24, 1\ns_add_u32 s28, s28, s29\ns_mul_i32 s28, s28, 229376\ns_mul_i32 s29, s10, 7168\ns_add_u32 s28, s28, s29")
    a("s_mov_b32 s36, 0xbfb8aa3b\ns_mov_b32 s37, 0xbfb8aa3b\ns_mov_b32 s38, 1.0\ns_mov_b32 s39, 1.0")
    k = 0
    for h in range(2):
        for n in range(NT):
            c = ACC + (h*NT + n)*16
            o = 12 + 4*(k & 1)
            T = 20
            for p in range(4):
                a(f"v_pk_mul_f32 v[{T+2*p}:{T+2*p+1}], v[{c+2*p}:{c+2*p+1}], s[36:37]")
            for e in range(8):
                a(f"v_exp_f32 v{T+e}, v{T+e}")
            for p in range(4):
                a(f"v_pk_add_f32 v[{T+2*p}:{T+2*p+1}], v[{T+2*p}:{T+2*p+1}], s[38:39]")
            for e in range(8):
                a(f"v_rcp_f32 v{T+e}, v{T+e}")
            for p in range(4):
                a(f"v_pk_mul_f32 v[{T+2*p}:{T+2*p+1}], v[{T+2*p}:{T+2*p+1}], v[{c+8+2*p}:{c+8+2*p+1}]")
            for p in range(4):
                a(f"v_cvt_pk_bf16_f32 v{o+p}, v{T+2*p}, v{T+2*p+1}")
            if n == 4:
                a("s_add_u32 s29, s28, 4096")
            so = "s28" if n < 4 else "s29"
            a(f"buffer_store_dwordx4 v[{o}:{o+3}], v10, s[20:23], {so} offen offset:{(n&3)*1024}")
            k += 1
        if h == 0:
            a("s_add_u32 s28, s28, 229376")
    a.label("g1_end")
    a("s_endpgm")
    return kernel_desc("gemm1_kernel", 256+96, 48, 256)

G2_RING = 5
G2_SLOT = 16384
G2_Z = G2_RING*G2_SLOT
def gen_gemm2(a):
    kernel_head(a, "gemm2_kernel")
    a("s_cmp_ge_u32 s2, 256\ns_cbranch_scc1 g2_end")
    a("s_load_dwordx2 s[4:5], s[0:1], 0")
    a("s_load_dwordx4 s[40:43], s[0:1], 72")
    a("s_load_dwordx2 s[8:9], s[0:1], 96")
    a("v_and_b32 v1, 63, v0\nv_lshrrev_b32 v2, 6, v0\ns_nop 0\nv_readfirstlane_b32 s24, v2")
    a("s_and_b32 s28, s2, 7\ns_lshr_b32 s29, s2, 3")
    a("s_lshr_b32 s10, s28, 1\ns_lshl_b32 s10, s10, 2\ns_lshr_b32 s30, s29, 3\ns_add_u32 s10, s10, s30")
    a("s_and_b32 s11, s28, 1\ns_lshl_b32 s11, s11, 3\ns_and_b32 s30, s29, 7\ns_add_u32 s11, s11, s30")
    a("v_lshrrev_b32 v12, 3, v1\nv_bfe_u32 v13, v1, 4, 1\nv_lshlrev_b32 v13, 2, v13\nv_and_b32 v14, 7, v1\nv_xor_b32 v13, v13, v14")
    a("v_lshlrev_b32 v12, 11, v12\nv_lshl_add_u32 v3, v13, 4, v12")
    for i in range(1, 4):
        a(f"v_add_u32 v{3+i}, {i*(16384-1024)}, v3")
    a("v_lshlrev_b32 v10, 4, v1")
    a("v_lshrrev_b32 v12, 5, v1\nv_lshlrev_b32 v12, 2, v12\nv_bfe_u32 v13, v1, 2, 2\nv_add_u32 v12, v12, v13\nv_lshlrev_b32 v12, 7, v12")
    a("v_bfe_u32 v13, v1, 4, 1\nv_lshl_add_u32 v12, v13, 5, v12\nv_and_b32 v13, 3, v1\nv_lshl_add_u32 v12, v13, 3, v12")
    a("v_bfe_u32 v13, v1, 3, 1\nv_lshl_add_u32 v8, v13, 6, v12")
    a("v_xor_b32 v9, 64, v8")
    a("s_waitcnt lgkmcnt(0)")
    srd(a, 12, 40, 41, 7340032)
    a(f"s_lshl_b32 s28, s10, 2\ns_add_u32 s28, s28, s24\ns_mul_i32 s29, s28, 229376\ns_add_u32 s29, s29, {H_OFF}")
    a("s_add_u32 s16, s8, s29\ns_addc_u32 s17, s9, 0\ns_mov_b32 s18, 229376\ns_mov_b32 s19, 0x20000")
    srd(a, 20, 8, 9, 4194304, add=ZT_OFF)
    srd(a, 44, 4, 5, 4194304)
    srd(a, 48, 42, 43, 4194304)
    srd(a, 52, 8, 9, 16384, add=ST_OFF)
    a("s_lshl_b32 s25, s24, 16\ns_lshl_b32 s29, s11, 7\ns_add_u32 s25, s25, s29")
    a("s_lshl_b32 s33, s24, 12\ns_mov_b32 s27, s33\ns_mov_b32 s26, 0\ns_mov_b32 s31, 0")
    a(f"s_add_u32 s34, s33, {G2_RING*G2_SLOT}")
    LA = 4; HD = 16
    WF = 64; HR = 96; ACC = 32
    XE = 160
    vt = VmTrack()
    state = {"emit": True}
    def E(s):
        if state["emit"]: a(s)
    def dma(stage, i):
        if i == 0: E("s_mov_b32 m0, s27\ns_nop 0")
        E(f"buffer_load_dwordx4 v{3+i}, s[12:15], s25 offen offset:{i*1024} lds")
        vt.issue(("W", stage, i))
        if i == 3:
            E(f"s_add_u32 s25, s25, 262144\ns_add_u32 s27, s27, {G2_SLOT}\ns_cmp_ge_u32 s27, s34\ns_cselect_b32 s27, s33, s27")
    def hload(t):
        tr = t % HD
        E(f"buffer_load_dwordx4 v[{HR+4*tr}:{HR+4*tr+3}], v10, s[16:19], s26 offen offset:{(t&3)*1024}")
        vt.issue(("H", t))
        if t & 3 == 3: E("s_add_u32 s26, s26, 4096")
    def wreads(j, st):
        l = []
        for n in range(2):
            for rd in range(2):
                l.append(f"ds_read_b64_tr_b16 v[{WF+8*st+4*n+2*rd}:{WF+8*st+4*n+2*rd+1}], v{6+n+10} offset:{(16*j+8*rd)*128}")
        return l
    waits = {}
    def vwait(site, tags):
        vt.need(site, tags)
        return waits.get(site, 0)
    def prologue():
        for i in range(4): dma(0, i)
        for t in range(4): hload(t)
        for i in range(4): dma(1, i)
        E("v_lshrrev_b32 v12, 4, v1\nv_lshlrev_b32 v12, 12, v12\nv_and_b32 v13, 15, v1\nv_lshl_add_u32 v12, v13, 4, v12")
        E("s_lshl_b32 s28, s11, 6\ns_lshl_b32 s29, s24, 4\ns_add_u32 s28, s28, s29\ns_lshl_b32 s28, s28, 12\ns_lshl_b32 s29, s10, 8\ns_add_u32 s28, s28, s29")
        for i in range(4):
            E(f"s_add_u32 m0, s33, {G2_Z + i*1024}\ns_nop 0")
            E(f"buffer_load_dwordx4 v12, s[20:23], s28 offen lds")
            vt.issue(("Z", i))
            E("s_add_u32 s28, s28, 16384")
        E("v_and_b32 v12, 31, v1\nv_lshlrev_b32 v11, 11, v12\nv_lshrrev_b32 v13, 5, v1\nv_lshl_add_u32 v11, v13, 3, v11")
        E("s_lshl_b32 s36, s10, 2\ns_add_u32 s36, s36, s24\ns_lshl_b32 s37, s36, 8\ns_lshl_b32 s36, s36, 16\ns_lshl_b32 s29, s11, 7\ns_add_u32 s36, s36, s29")
        for q in range(8):
            E(f"buffer_load_dwordx2 v[{XE+2*q}:{XE+2*q+1}], v11, s[44:47], s36 offen offset:{16*q}")
            vt.issue(("XE", q))
        E("v_lshlrev_b32 v12, 3, v12")
        E(f"buffer_load_dwordx2 v[{XE+16}:{XE+17}], v12, s[52:55], s37 offen")
        vt.issue(("ST",))
        for s in (-2, -1):
            for j in range(8):
                if s == -2 and j < 4: continue
                if j in (4, 6): dma(s+4, (j-4)//2)
                if j in (0, 2): dma(s+3, 2 + j//2)
                hload(8*s + j + HD)
        for r in range(32):
            E(f"v_mov_b32 v{ACC+r}, 0")
        n = vwait("pro", [("W", 0, i) for i in range(4)])
        E(f"s_waitcnt vmcnt({n})\ns_barrier\nv_mov_b32 v16, v8\nv_mov_b32 v17, v9")
        for j in range(LA):
            for l in wreads(j, j): E(l)
    def stage_body(s, sp):
        for j in range(8):
            t = 8*s + j
            st = t % LA
            if j == 8 - LA:
                n = vwait(("B", sp), [("W", s+1, i) for i in range(4)])
                E(f"s_waitcnt vmcnt({n})\ns_barrier")
                E(f"s_add_u32 s31, s31, {G2_SLOT}\ns_cmp_ge_u32 s31, {G2_RING*G2_SLOT}\ns_cselect_b32 s31, 0, s31\nv_add_u32 v16, s31, v8\nv_add_u32 v17, s31, v9")
            nx = vwait(("H", sp, j), [("H", t)])
            E(f"s_waitcnt vmcnt({nx}) lgkmcnt({4*(LA-1)})")
            tr = t % HD
            for n in range(2):
                c = ACC + 16*n
                E(f"v_mfma_f32_32x32x16_bf16 v[{c}:{c+15}], v[{WF+8*st+4*n}:{WF+8*st+4*n+3}], v[{HR+4*tr}:{HR+4*tr+3}], v[{c}:{c+15}]")
            for l in wreads((j+LA) % 8, st): E(l)
            if j in (4, 6): dma(s+4, (j-4)//2)
            if j in (0, 2): dma(s+3, 2 + j//2)
            hload(t + HD)
    state["emit"] = False
    prologue()
    for s in range(28): stage_body(s, s & 1)
    waits.update(vt.site)
    assert max(waits.values()) <= 63, waits
    vt2 = VmTrack(); vt.__dict__.update(vt2.__dict__)
    state["emit"] = True
    prologue()
    a("s_mov_b32 s35, 0")
    a.label("g2_loop")
    stage_body(0, 0); stage_body(1, 1)
    a("s_add_u32 s35, s35, 1\ns_cmp_lt_u32 s35, 14\ns_cbranch_scc1 g2_loop")
    a("v_lshrrev_b32 v12, 5, v1\nv_lshlrev_b32 v12, 2, v12\nv_bfe_u32 v13, v1, 2, 2\nv_add_u32 v12, v12, v13\nv_lshlrev_b32 v12, 8, v12")
    a("v_bfe_u32 v13, v1, 4, 1\nv_lshl_add_u32 v12, v13, 5, v12\nv_and_b32 v13, 3, v1\nv_lshl_add_u32 v12, v13, 3, v12")
    a(f"s_lshl_b32 s28, s24, 6\ns_add_u32 s28, s28, {G2_Z}\nv_add_u32 v12, s28, v12")
    a("s_waitcnt vmcnt(0) lgkmcnt(0)")
    for q in range(8):
        a(f"ds_read_b64_tr_b16 v[{64+2*q}:{65+2*q}], v12 offset:{q*8*256}")
    a("s_waitcnt lgkmcnt(0)")
    M = XE + 16; RS = XE + 17
    for q in range(8):
        for d in range(2):
            x = XE + 2*q + d; z = 64 + 2*q + d; c = ACC + 4*q + 2*d
            a(f"v_lshlrev_b32 v20, 16, v{x}\nv_and_b32 v21, 0xffff0000, v{x}")
            a(f"v_sub_f32 v22, v20, v{M}\nv_sub_f32 v23, v21, v{M}")
            a("v_cvt_pk_bf16_f32 v22, v22, v23\nv_and_b32 v23, 0xffff0000, v22\nv_lshlrev_b32 v22, 16, v22")
            a(f"v_mul_f32 v22, v22, v{RS}\nv_mul_f32 v23, v23, v{RS}")
            a("v_cvt_pk_bf16_f32 v22, v22, v23\nv_and_b32 v23, 0xffff0000, v22\nv_lshlrev_b32 v22, 16, v22")
            a(f"v_lshlrev_b32 v24, 16, v{z}\nv_and_b32 v25, 0xffff0000, v{z}")
            a("v_mul_f32 v22, v22, v24\nv_mul_f32 v23, v23, v25")
            a("v_cvt_pk_bf16_f32 v22, v22, v23\nv_and_b32 v23, 0xffff0000, v22\nv_lshlrev_b32 v22, 16, v22")
            a("v_add_f32 v22, v22, v20\nv_add_f32 v23, v23, v21")
            a("v_cvt_pk_bf16_f32 v22, v22, v23\nv_and_b32 v23, 0xffff0000, v22\nv_lshlrev_b32 v22, 16, v22")
            a(f"v_cvt_pk_bf16_f32 v24, v{c}, v{c+1}\nv_and_b32 v25, 0xffff0000, v24\nv_lshlrev_b32 v24, 16, v24")
            a("v_add_f32 v22, v22, v24\nv_add_f32 v23, v23, v25")
            a(f"v_cvt_pk_bf16_f32 v{96+2*q+d}, v22, v23")
        a(f"buffer_store_dwordx2 v[{96+2*q}:{97+2*q}], v11, s[48:51], s36 offen offset:{16*q}")
    a.label("g2_end")
    a("s_endpgm")
    return kernel_desc("gemm2_kernel", 184, 64, 184)

def main(out):
    a = Asm()
    descs = []
    launches = [
        f"; @launch kernel=prep_kernel grid=(512,1,1) block=(256,1,1) lds=16384",
        f"; @launch kernel=conv_kernel grid=(256,1,1) block=(256,1,1) lds={4*CONV_WB}",
        f"; @launch kernel=gemm1_kernel grid=(256,1,1) block=(256,1,1) lds={G1_RING*G1_SLOT}",
        f"; @launch kernel=gemm2_kernel grid=(256,1,1) block=(256,1,1) lds={G2_Z+16384}",
    ]
    for g in (gen_prep, gen_conv, gen_gemm1, gen_gemm2):
        descs.append(g(a))
    txt = HEADER + "\n".join(launches) + '\n.amdgcn_target "amdgcn-amd-amdhsa--gfx950"\n.text\n' + a.text()
    txt += '.section .rodata,"a"\n' + "".join(descs)
    open(out, "w").write(txt)

if __name__ == "__main__":
    main(sys.argv[1] if len(sys.argv) > 1 else "parallel_sum__ssm_conv_h3__glu_gated_glu__prompt.s")
```
